```python
import torch

def _softmax(x, axis=-1):
    return torch.softmax(x, dim=axis)

def _gelu(x):
    return torch.nn.functional.gelu(x, approximate='tanh')

def _silu(x):
    return torch.nn.functional.silu(x)

def _sigmoid(x):
    return torch.sigmoid(x)

def _layernorm(x, axis=-1, eps=1e-05):
    m = x.mean(dim=axis, keepdim=True)
    v = x.var(dim=axis, keepdim=True, unbiased=False)
    return (x - m) / torch.sqrt(v + eps)

def _scatter_add(tgt, idx, src, axis=0):
    return tgt.clone().index_add_(axis, idx, src)

def _segment_sum(src, seg, n):
    out = torch.zeros((n,) + src.shape[1:], dtype=src.dtype)
    return out.index_add_(0, seg, src)

def _pad(x, pw):
    flat = tuple((v for pair in reversed(pw) for v in pair))
    return torch.nn.functional.pad(x, flat)
kernel_name = 'standalone__video_timesformer__vision'

def setup_inputs():

    _w = lambda a: (lambda t: t.to(torch.bfloat16) if t.is_floating_point() else t)(torch.as_tensor(a))
    T = 8
    p = 14
    HW = 384 // p * p
    N = (HW // p) ** 2
    C = 192
    return {'x': _w((lambda *s: torch.randn(*s, dtype=torch.bfloat16) * 0.05)(1, T, N, C)), 'wqkv_t': _w((lambda *s: torch.randn(*s, dtype=torch.bfloat16) * 0.05)(C, 3 * C)), 'wo_t': _w((lambda *s: torch.randn(*s, dtype=torch.bfloat16) * 0.05)(C, C)), 'wqkv_s': _w((lambda *s: torch.randn(*s, dtype=torch.bfloat16) * 0.05)(C, 3 * C)), 'wo_s': _w((lambda *s: torch.randn(*s, dtype=torch.bfloat16) * 0.4)(C, C))}

def reference(x, wqkv_t, wo_t, wqkv_s, wo_s):
    B, T, N, C = x.shape
    scale = C ** (-0.5)
    xt = (lambda x, *d: x.permute(*d))(x, 0, 2, 1, 3).reshape(B * N, T, C)
    h = _layernorm(xt, axis=-1)
    qkv = h @ wqkv_t
    q, k, v = (qkv[..., :C].clone(), qkv[..., C:2 * C].clone(), qkv[..., 2 * C:].clone())
    a = _softmax(torch.einsum('btc,bsc->bts', q, k) * scale, axis=-1)
    xt = xt + torch.einsum('bts,bsc->btc', a, v) @ wo_t
    x1 = (lambda x, *d: x.permute(*d))(xt.reshape(B, N, T, C), 0, 2, 1, 3)
    xs = x1.reshape(B * T, N, C)
    h = _layernorm(xs, axis=-1)
    qkv = h @ wqkv_s
    q, k, v = (qkv[..., :C].clone(), qkv[..., C:2 * C].clone(), qkv[..., 2 * C:].clone())
    a = _softmax(torch.einsum('bnc,bmc->bnm', q, k) * scale, axis=-1)
    xs = xs + torch.einsum('bnm,bmc->bnc', a, v) @ wo_s
    return xs.reshape(B, T, N, C)
```

```python
import re

TRANS = ("v_exp_f32", "v_log_f32", "v_rcp_f32", "v_rsq_f32", "v_sqrt_f32", "v_sin_f32", "v_cos_f32")
REG_RE = re.compile(r"^(-|abs\()?([vas])(\d+)\)?$")
RNG_RE = re.compile(r"^(-)?([vas])\[(\d+):(\d+)\]$")

def regs_of(op):
    op = op.strip()
    m = REG_RE.match(op)
    if m:
        return [(m.group(2), int(m.group(3)))]
    m = RNG_RE.match(op)
    if m:
        return [(m.group(2), i) for i in range(int(m.group(3)), int(m.group(4)) + 1)]
    if op == "vcc":
        return [("s", "vcc")]
    if op == "m0":
        return [("s", "m0")]
    if op == "exec":
        return [("s", "exec")]
    return []

def v(i, n=1):
    return "v%d" % i if n == 1 else "v[%d:%d]" % (i, i + n - 1)
def a(i, n=1):
    return "a%d" % i if n == 1 else "a[%d:%d]" % (i, i + n - 1)
def s(i, n=1):
    return "s%d" % i if n == 1 else "s[%d:%d]" % (i, i + n - 1)

class Ins:
    __slots__ = ("op", "ops", "mods", "cls", "rd", "wr", "tag", "text", "passes", "skip", "dpp", "srcc", "srcab")
    def __init__(self, op, ops=(), mods="", tag=None):
        self.op, self.ops, self.mods, self.tag = op, [str(o) for o in ops], mods, tag
        self.text = None
        self.skip = False
        self.passes = 0
        self.dpp = False
        self.srcc = []
        self.srcab = []
        self.classify()
    def classify(self):
        op, ops = self.op, self.ops
        R = lambda i: regs_of(ops[i]) if i < len(ops) else []
        allr = lambda st: [r for o in ops[st:] for r in regs_of(o)]
        rd, wr = [], []
        if op.startswith("v_mfma"):
            cls = "mfma"
            wr = R(0); self.srcab = R(1) + R(2); self.srcc = R(3); rd = self.srcab + self.srcc
            self.passes = 8 if "32x32" in op else 4
        elif op.startswith("ds_read"):
            cls = "ds_read"; wr = R(0); rd = allr(1)
        elif op.startswith("ds_write"):
            cls = "ds_write"; rd = allr(0)
        elif op.startswith("buffer_load"):
            if " lds" in " " + self.mods:
                cls = "vm_lds"; rd = allr(0) + [("s", "m0")]
            else:
                cls = "vm_load"; wr = R(0); rd = allr(1)
        elif op.startswith("buffer_store"):
            cls = "vm_store"; rd = allr(0)
        elif op.startswith("buffer_atomic"):
            cls = "vm_store"; rd = allr(0)
        elif op.startswith("s_load") or op.startswith("s_memtime") or op.startswith("s_memrealtime"):
            cls = "smem"; wr = R(0); rd = allr(1)
        elif op in ("s_waitcnt",):
            cls = "wait"
        elif op == "s_barrier":
            cls = "barrier"
        elif op == "s_nop":
            cls = "nop"
        elif op.startswith("s_cbranch") or op == "s_branch" or op == "s_endpgm":
            cls = "branch"
            if "vcc" in op: rd = [("s", "vcc")]
        elif op.startswith("s_cmp") or op.startswith("s_bitcmp"):
            cls = "salu"; rd = allr(0)
        elif op in ("s_setprio", "s_sleep"):
            cls = "salu"
        elif op.startswith("s_"):
            cls = "salu"; wr = R(0); rd = allr(1)
            if "saveexec" in op:
                wr = wr + [("s", "exec")]; rd = rd + [("s", "exec")]
        elif op.startswith("v_"):
            cls = "trans" if op.startswith(TRANS) else "valu"
            if op.startswith("v_permlane"):
                wr = R(0) + R(1); rd = R(0) + R(1); cls = "perml"
            elif op.startswith("v_cmp"):
                wr = R(0); rd = allr(1)
            elif op.startswith("v_readfirstlane") or op.startswith("v_readlane"):
                wr = R(0); rd = allr(1); cls = "rdlane"
            else:
                wr = R(0); rd = allr(1)
                if op.startswith(("v_fmac", "v_dot2c", "v_pk_fmac")):
                    rd = rd + R(0)
                if op.startswith("v_cndmask") and len(ops) == 3:
                    rd = rd + [("s", "vcc")]
                if op.startswith("v_dot2"):
                    cls = "dot"
            if "quad_perm" in self.mods or "row_" in self.mods.replace("row_mask", ""):
                self.dpp = True
        else:
            raise ValueError("unknown op " + op)
        self.cls, self.rd, self.wr = cls, rd, wr
    def render(self):
        t = self.op
        if self.ops:
            t += " " + ", ".join(self.ops)
        if self.mods:
            t += " " + self.mods
        return "    " + t

class Mark:
    def __init__(self, kind, text="", **kw):
        self.kind, self.text, self.kw = kind, text, kw

class Prog:
    def __init__(self):
        self.items = []
        self._uid = 0
        self._skip = False
    def __call__(self, op, *ops, mods="", tag=None):
        i = Ins(op, ops, mods, tag)
        i.skip = self._skip
        self.items.append(i)
        return i
    def add(self, ins):
        ins.skip = self._skip
        self.items.append(ins)
    def label(self, name, reset=False):
        self.items.append(Mark("label", name, reset=reset))
    def raw(self, text):
        self.items.append(Mark("raw", text))
    def c(self, text):
        self.items.append(Mark("raw", "    ; " + text))
    def uid(self, p="L"):
        self._uid += 1
        return "%s_%d" % (p, self._uid)
    def skip_begin(self):
        self._skip = True
    def skip_end(self):
        self._skip = False
    def wait_vm(self, tag):
        self.items.append(Mark("wait_vm", tag))
    def wait_lgkm(self, tag):
        self.items.append(Mark("wait_lgkm", tag))
    def wait_all_lgkm(self):
        self("s_waitcnt", mods="lgkmcnt(0)")
    def wait_all_vm(self):
        self("s_waitcnt", mods="vmcnt(0)")
    def set_vm(self, entries):
        self.items.append(Mark("set_vm", entries=entries))
    def reset_state(self):
        self.items.append(Mark("reset"))

    def pass_waits(self):
        out = []
        lq, vq = [], []
        def emit_wait(nl, nv):
            parts = []
            if nv is not None: parts.append("vmcnt(%d)" % min(nv, 63))
            if nl is not None: parts.append("lgkmcnt(%d)" % min(nl, 15))
            w = Ins("s_waitcnt", (), " ".join(parts))
            w.skip = False
            out.append(w)
            if nv is not None:
                keep = min(nv, 63)
                del vq[:max(0, len(vq) - keep)]
            if nl is not None:
                keep = min(nl, 15)
                del lq[:max(0, len(lq) - keep)]
        for it in self.items:
            if isinstance(it, Mark):
                if it.kind == "wait_vm" or it.kind == "wait_lgkm":
                    q = vq if it.kind == "wait_vm" else lq
                    pos = [k for k, e in enumerate(q) if e[1] == it.text]
                    if pos:
                        n = len(q) - 1 - pos[-1]
                        if it.kind == "wait_vm": emit_wait(None, n)
                        else: emit_wait(0 if any(e[2] for e in q) else n, None)
                    continue
                if it.kind == "set_vm":
                    vq.clear()
                    for tg, n in it.kw["entries"]:
                        vq.extend((set(), tg, False) for _ in range(n))
                    continue
                if it.kind == "reset" or (it.kind == "label" and it.kw.get("reset")):
                    lq.clear(); vq.clear()
                    if it.kind == "reset": continue
                out.append(it)
                continue
            if it.cls == "wait":
                m = re.search(r"vmcnt\((\d+)\)", it.mods)
                if m: del vq[:max(0, len(vq) - int(m.group(1)))]
                m = re.search(r"lgkmcnt\((\d+)\)", it.mods)
                if m: del lq[:max(0, len(lq) - int(m.group(1)))]
                out.append(it)
                continue
            touched = set(it.rd) | set(it.wr)
            nl = nv = None
            for k, e in enumerate(lq):
                if e[0] & touched:
                    n = 0 if any(x[2] for x in lq) else len(lq) - 1 - k
                    nl = n if nl is None else min(nl, n)
            for k, e in enumerate(vq):
                if e[0] & touched:
                    n = len(vq) - 1 - k
                    nv = n if nv is None else min(nv, n)
            if nl is not None or nv is not None:
                assert not it.skip, "memory-dependent instruction inside a skippable block: " + it.render()
                emit_wait(nl, nv)
            if it.cls in ("ds_read", "ds_write", "smem", "vm_load", "vm_store", "vm_lds"):
                assert not it.skip, "memory op inside a skippable block: " + it.render()
            if it.cls == "ds_read": lq.append((set(it.wr), it.tag, False))
            elif it.cls == "ds_write": lq.append((set(), it.tag, False))
            elif it.cls == "smem":
                lq.append((set(it.wr), it.tag, True))
            elif it.cls == "vm_load": vq.append((set(it.wr), it.tag, False))
            elif it.cls in ("vm_store", "vm_lds"): vq.append((set(), it.tag, False))
            out.append(it)
        self.items = out

    @staticmethod
    def need(p, c):
        n = 0
        pw, cr, cw = set(p.wr), set(c.rd), set(c.wr)
        vec = lambda S: {r for r in S if r[0] in "va"}
        sg = lambda S: {r for r in S if r[0] == "s"}
        pv = p.cls in ("valu", "trans", "perml", "dot", "rdlane")
        cv = c.cls in ("valu", "trans", "perml", "dot", "rdlane")
        if pv and c.cls == "mfma" and vec(pw) & cr: n = max(n, 2)
        if p.cls == "mfma":
            big = p.passes == 8
            if c.cls == "mfma":
                if pw & set(c.srcab): n = max(n, 12 if big else 8)
                ov = pw & set(c.srcc)
                if ov and not (set(c.srcc) == pw and c.passes == p.passes): n = max(n, 10 if big else 6)
                if pw & cw and not (set(c.srcc) == pw and cw == pw and c.passes == p.passes) and not ov:
                    n = max(n, 12 if big else 8)
            elif (cv or c.cls in ("ds_read", "ds_write", "vm_load", "vm_store", "vm_lds")) and pw & (cr | cw):
                n = max(n, 12 if big else 8)
            if cv and set(p.srcc) & cw: n = max(n, 7 if big else 3)
        if p.cls == "trans" and cv and c.cls != "trans" and pw & cr: n = max(n, 1)
        if p.cls == "trans" and c.cls == "trans" and pw & cr: n = max(n, 1)
        if pv and c.dpp and vec(pw) & cr: n = max(n, 2)
        if pv and c.cls == "perml" and vec(pw) & cr: n = max(n, 2)
        if pv and c.cls == "rdlane" and vec(pw) & cr: n = max(n, 1)
        if p.cls == "dot" and (pw & (cr | cw)):
            if c.cls == "dot" and c.op == p.op:
                if pw & set(regs_of(c.ops[1]) + regs_of(c.ops[2])): n = max(n, 3)
            else:
                n = max(n, 3)
        if pv and sg(pw):
            if cv and sg(pw) & cr: n = max(n, 2)
            if c.cls == "rdlane" and sg(pw) & cr: n = max(n, 4)
            if c.cls in ("vm_load", "vm_store", "vm_lds") and sg(pw) & cr: n = max(n, 5)
            if c.cls in ("salu", "branch") and sg(pw) & cr: n = max(n, 1 if c.cls == "branch" else 3)
        if p.cls == "salu" and ("s", "m0") in pw and c.cls == "vm_lds": n = max(n, 1)
        if p.cls == "vm_store" and ("x3" in p.op or "x4" in p.op):
            data = set(regs_of(p.ops[0]))
            if data & cw: n = max(n, 2)
        if p.cls == "salu" and ("s", "exec") in pw and c.dpp: n = max(n, 0)
        return n
    def pass_nops(self):
        out = []
        hist = []
        for it in self.items:
            if isinstance(it, Mark):
                out.append(it)
                continue
            req = 0
            for p, d in hist:
                r = self.need(p, it)
                if r > d: req = max(req, r - d)
            while req > 0:
                k = min(req, 16)
                nop = Ins("s_nop", (str(k - 1),))
                out.append(nop)
                hist = [(p, d + k) for p, d in hist]
                req -= k
            out.append(it)
            inc = (int(it.ops[0]) + 1) if it.cls == "nop" else 1
            if it.skip:
                hist = [(p, d) for p, d in hist if d < 24]
            else:
                hist = [(p, d + inc) for p, d in hist if d + inc < 24]
            hist.append((it, 0))
        self.items = out
    def finish(self):
        self.pass_waits()
        self.pass_nops()
    def text(self):
        L = []
        for it in self.items:
            if isinstance(it, Mark):
                if it.kind == "label": L.append(it.text + ":")
                elif it.kind == "raw": L.append(it.text)
            else:
                L.append(it.render())
        return "\n".join(L) + "\n"

def kernel_head(name):
    return ".text\n.globl %s\n.p2align 8\n.type %s,@function\n%s:\n" % (name, name, name)

def kernel_desc(name, vgpr, accum, sgpr=102):
    return (".section .rodata,\"a\"\n.p2align 6\n.amdhsa_kernel %s\n"
            "  .amdhsa_next_free_vgpr %d\n  .amdhsa_next_free_sgpr %d\n  .amdhsa_accum_offset %d\n"
            "  .amdhsa_group_segment_fixed_size 0\n  .amdhsa_kernarg_size 64\n  .amdhsa_user_sgpr_count 2\n"
            "  .amdhsa_user_sgpr_kernarg_segment_ptr 1\n  .amdhsa_system_sgpr_workgroup_id_x 1\n"
            "  .amdhsa_float_denorm_mode_32 3\n"
            ".end_amdhsa_kernel\n") % (name, vgpr, sgpr, accum)
```

```python
from asmgen import *

FRAME = 729 * 384
XBYTES = 8 * FRAME
HS_OFF, X1_OFF = 0, XBYTES
MF_OFF = 2 * XBYTES
WF_OFF = MF_OFF + 73728
WS_USED = WF_OFF + 73728
NMAIN, NSIDE = 183, 36
SLAB = 12288
RING = 10
HBUF = RING * SLAB
XBUF = HBUF + SLAB
SBUF = XBUF + SLAB
K1_LDS = SBUF + 8192
LOG2E = 1.4426950408889634
SCALE = 192 ** -0.5

def f2u(x):
    import struct
    return struct.unpack("<I", struct.pack("<f", x))[0]
def hexf(x):
    return "0x%08x" % f2u(x)

def srd(p, sreg, ptr, nbytes):
    p("s_mov_b32", s(sreg), s(ptr))
    p("s_and_b32", s(sreg + 1), s(ptr + 1), "0xffff")
    p("s_mov_b32", s(sreg + 2), "0x%x" % nbytes)
    p("s_mov_b32", s(sreg + 3), "0x20000")

def layernorm_rows(p, X, out, tmp, sONES):
    s0, s1, q0, q1, mean, rstd, nb = [tmp + i for i in range(7)]
    U = tmp + 8
    p("v_dot2_f32_bf16", v(s0), v(X), s(sONES), "0")
    p("v_dot2_f32_bf16", v(q0), v(X), v(X), "0")
    p("v_dot2_f32_bf16", v(s1), v(X + 1), s(sONES), "0")
    p("v_dot2_f32_bf16", v(q1), v(X + 1), v(X + 1), "0")
    for i in range(2, 12):
        a_, b_ = (s0, q0) if i % 2 == 0 else (s1, q1)
        p("v_dot2_f32_bf16", v(a_), v(X + i), s(sONES), v(a_))
        p("v_dot2_f32_bf16", v(b_), v(X + i), v(X + i), v(b_))
    p("v_add_f32", v(s0), v(s0), v(s1))
    p("v_add_f32", v(q0), v(q0), v(q1))
    for m in ("quad_perm:[1,0,3,2]", "quad_perm:[2,3,0,1]", "row_half_mirror"):
        p("v_add_f32_dpp", v(s0), v(s0), v(s0), mods=m + " row_mask:0xf bank_mask:0xf")
        p("v_add_f32_dpp", v(q0), v(q0), v(q0), mods=m + " row_mask:0xf bank_mask:0xf")
    p("v_mul_f32", v(mean), hexf(1.0 / 192), v(s0))
    p("v_mul_f32", v(q0), hexf(1.0 / 192), v(q0))
    p("v_fma_f32", v(q0), "-" + v(mean), v(mean), v(q0))
    p("v_max_f32", v(q0), "0", v(q0))
    p("v_add_f32", v(q0), hexf(1e-5), v(q0))
    p("v_rsq_f32", v(rstd), v(q0))
    p("v_mul_f32", v(nb), v(mean), v(rstd))
    for i in range(12):
        lo, hi = U + 2 * (i % 4), U + 2 * (i % 4) + 1
        p("v_lshlrev_b32", v(lo), "16", v(X + i))
        p("v_and_b32", v(hi), "0xffff0000", v(X + i))
        p("v_fma_f32", v(lo), v(lo), v(rstd), "-" + v(nb))
        p("v_fma_f32", v(hi), v(hi), v(rstd), "-" + v(nb))
        p("v_cvt_pk_bf16_f32", v(out + i), v(lo), v(hi))

def gen_k1(p):
    sX, sWQ, sWO, sWS = 20, 24, 28, 32
    sW, sONES, sN0 = 36, 37, 38
    sT0, sT1, sT2, sT3 = 40, 41, 42, 43
    sVAL = 44
    sM0 = 46
    p("s_cmp_ge_u32", s(2), str(NMAIN + NSIDE))
    p("s_cbranch_scc1", "K1_done")
    p("s_load_dwordx16", s(4, 16), s(0, 2), "0")
    vL, vI, vG = 1, 2, 3
    p("v_and_b32", v(vL), "63", v(0))
    p("v_lshrrev_b32", v(4), "6", v(0))
    p("v_and_b32", v(vI), "15", v(0))
    p("v_readfirstlane_b32", s(sW), v(4))
    p("v_bfe_u32", v(vG), v(0), "4", "2")
    p("s_mov_b32", s(sONES), "0x3f803f80")
    p("s_waitcnt", mods="lgkmcnt(0)")
    p("s_cmp_ge_u32", s(2), str(NMAIN))
    p("s_cbranch_scc1", "K1_side")

    srd(p, sX, 4, XBYTES)
    srd(p, sWQ, 6, 221184)
    srd(p, sWO, 8, 73728)
    srd(p, sWS, 18, WS_USED)
    p("s_lshl_b32", s(sN0), s(2), "2")

    vXg, vLn, vHs, vX1 = 4, 5, 6, 7
    vDq, vDo = 8, 11
    vTr, vTrH = 14, 17
    vC8 = 20
    vHf = 23
    vSb = 25
    vPf0, vPf1 = 26, 27
    t0, t1, t2, t3, t4, t5 = 28, 29, 30, 31, 32, 33
    XR = 36
    HN = 48
    LT = 60
    hF = 76
    aS = [124, 148]
    accQ, accK, accV = 172, 196, 220
    PB = 244
    SR = 248

    p.c("row layout: rho = l>>3, j = l&7, t = 2w + (rho>>2), p = rho&3, tau = 8p + t")
    p("v_bfe_u32", v(t0), v(0), "3", "2")
    p("v_bfe_u32", v(t1), v(0), "5", "1")
    p("s_lshl_b32", s(sT0), s(sW), "1")
    p("v_add_u32", v(t1), s(sT0), v(t1))
    p("v_and_b32", v(t2), "7", v(0))
    p("v_add_u32", v(t3), s(sN0), v(t0))
    p("s_mov_b32", s(sT1), str(FRAME))
    p("v_mul_lo_u32", v(vXg), v(t1), s(sT1))
    p("v_mul_u32_u24", v(t4), "384", v(t3))
    p("v_add_u32", v(vXg), v(vXg), v(t4))
    p("v_lshl_add_u32", v(vX1), v(t2), "4", v(vXg))
    p.c("x loads")
    for u in range(3):
        p("buffer_load_dwordx4", v(XR + 4 * u, 4), v(vX1), s(sX, 4), "0", mods="offen offset:%d" % (128 * u), tag="x")
    p.c("L2 prefetch of this workgroup's slice of the weights (64-byte granules)")
    p("s_lshr_b32", s(sT0), s(2), "3")
    p("s_mul_i32", s(sT0), s(sT0), "201")
    p("v_add_u32", v(t5), s(sT0), v(0))
    p("v_lshlrev_b32", v(t5), "6", v(t5))
    p("v_cmp_gt_u32", "vcc", "201", v(0))
    p("v_mov_b32", v(t4), "0x7fffffff")
    p("v_cndmask_b32", v(t5), v(t4), v(t5), "vcc")
    p("buffer_load_dword", v(vPf0), v(t5), s(sWQ, 4), "0", mods="offen", tag="pf")
    p("v_subrev_u32", v(t5), "221184", v(t5))
    p("buffer_load_dword", v(vPf1), v(t5), s(sWO, 4), "0", mods="offen", tag="pf")

    p.c("DMA source offsets")
    p("s_and_b32", s(sT0), s(sW), "1")
    p("s_lshl_b32", s(sT0), s(sT0), "2")
    p("s_lshl_b32", s(sT1), s(sW), "3")
    for u in range(3):
        p("v_add_u32", v(t4), str(64 * u), v(vL))
        p("v_mul_u32_u24", v(t5), "171", v(t4))
        p("v_lshrrev_b32", v(t5), "12", v(t5))
        p("v_mul_u32_u24", v(vDq + u), "24", v(t5))
        p("v_sub_u32", v(t4), v(t4), v(vDq + u))
        p("v_and_b32", v(vDq + u), "2", v(t5))
        p("v_or_b32", v(vDq + u), s(sT0), v(vDq + u))
        p("v_xor_b32", v(t4), v(t4), v(vDq + u))
        p("v_lshlrev_b32", v(t4), "4", v(t4))
        p("v_add_u32", v(t5), s(sT1), v(t5))
        p("v_mul_u32_u24", v(vDq + u), "1152", v(t5))
        p("v_add_u32", v(vDq + u), v(vDq + u), v(t4))
        p("v_mul_u32_u24", v(vDo + u), "384", v(t5))
        p("v_add_u32", v(vDo + u), v(vDo + u), v(t4))
    p("s_mul_i32", s(sM0), s(sW), "3072")

    def slab_src(n):
        if n < 12: return sWQ, vDq, (n // 2) * 32 * 1152 + (n % 2) * 384
        if n < 18: return sWQ, vDq, (n - 12) * 32 * 1152 + 768
        return sWO, vDo, (n - 18) * 32 * 384
    def dma_group(b):
        for n in (2 * b, 2 * b + 1):
            sr, vo, so = slab_src(n)
            p("s_mov_b32", s(sT2), str(so))
            for u in range(3):
                p("s_add_u32", "m0", s(sM0), str((n % RING) * SLAB + 1024 * u))
                p("buffer_load_dwordx4", v(vo + u), s(sr, 4), s(sT2), mods="offen lds", tag="g%d" % b)
    for b in range(5):
        dma_group(b)

    p.c("remaining addresses")
    p("v_bfe_u32", v(t0), v(0), "3", "2")
    p("v_lshl_add_u32", v(t4), v(t0), "3", v(t1))
    p("v_bfe_u32", v(t5), v(t4), "1", "3")
    p("v_xor_b32", v(t5), v(t5), v(t2))
    p("v_mul_u32_u24", v(vLn), "24", v(t4))
    p("v_add_u32", v(vLn), v(vLn), v(t5))
    p("v_lshlrev_b32", v(vLn), "4", v(vLn))
    p("v_add_u32", v(vLn), str(HBUF), v(vLn))
    p("v_bfe_u32", v(t4), v(t3), "1", "1")
    p("v_bfe_u32", v(t5), v(t3), "2", "2")
    p("v_lshl_or_b32", v(t4), v(t4), "2", v(t5))
    p("v_xor_b32", v(t4), v(t4), v(t2))
    p("v_lshl_add_u32", v(vHs), v(t4), "4", v(vXg))
    p("v_cmp_gt_u32", "vcc", "729", v(t3))
    p("v_mov_b32", v(t4), "0x7fffffff")
    p("v_cndmask_b32", v(vHs), v(t4), v(vHs), "vcc")
    p("v_add_u32", v(t5), str(X1_OFF), v(vX1))
    p("v_cndmask_b32", v(vX1), v(t4), v(t5), "vcc")
    p("v_lshrrev_b32", v(t0), "1", v(vI))
    p("v_mul_u32_u24", v(t1), "24", v(vI))
    for b in range(2):
        p("v_add_u32", v(t4), str(4 * b), v(vG))
        p("v_xor_b32", v(t4), v(t4), v(t0))
        p("v_add_lshl_u32", v(vHf + b), v(t4), v(t1), "4")
        p("v_add_u32", v(vHf + b), str(HBUF), v(vHf + b))
    p("s_mul_i32", s(sT0), s(sW), "6")
    p("v_lshrrev_b32", v(t2), "1", v(vG))
    p("v_and_b32", v(t3), "1", v(vG))
    p("v_lshlrev_b32", v(t3), "3", v(t3))
    p("v_add_u32", v(t3), str(HBUF), v(t3))
    for T in range(3):
        p("s_add_u32", s(sT1), s(sT0), str(2 * T))
        p("v_add_u32", v(t4), s(sT1), v(t2))
        p("v_xor_b32", v(t4), v(t4), v(t0))
        p("v_add_lshl_u32", v(t4), v(t4), v(t1), "4")
        p("v_add_u32", v(vC8 + T), v(t4), v(t3))
    p("v_lshrrev_b32", v(t0), "2", v(vI))
    p("v_lshl_add_u32", v(t1), v(vG), "3", v(t0))
    p("v_mul_u32_u24", v(t1), "24", v(t1))
    p("v_and_b32", v(t0), "2", v(t0))
    p("v_and_b32", v(t2), "1", v(vG))
    p("v_lshl_or_b32", v(t0), v(t2), "2", v(t0))
    p("v_bfe_u32", v(t2), v(0), "1", "1")
    p("v_and_b32", v(t3), "1", v(0))
    p("v_lshlrev_b32", v(t3), "3", v(t3))
    for T in range(3):
        p("s_add_u32", s(sT1), s(sT0), str(2 * T))
        p("v_add_u32", v(t4), s(sT1), v(t2))
        p("v_xor_b32", v(t4), v(t4), v(t0))
        p("v_add_lshl_u32", v(t4), v(t4), v(t1), "4")
        p("v_add_u32", v(vTr + T), v(t4), v(t3))
        p("v_add_u32", v(vTrH + T), str(5 * SLAB), v(vTr + T))
    p("s_lshl_b32", s(sT1), s(sW), "11")
    p("v_lshlrev_b32", v(vSb), "4", v(vL))
    p("v_add_u32", v(vSb), str(SBUF), v(vSb))
    p("v_add_u32", v(t5), s(sT1), v(vSb))
    vSw = t5
    p("v_lshrrev_b32", v(t0), "1", v(vG))
    p("v_lshrrev_b32", v(t1), "3", v(vI))
    p("v_cmp_eq_u32", s(sVAL, 2), v(t0), v(t1))

    p.c("LN1")
    for u in range(3):
        p("ds_write_b128", v(vLn), v(XR + 4 * u, 4), mods="offset:%d" % (SLAB + 128 * u))
    layernorm_rows(p, XR, HN, LT, sONES)
    for u in range(3):
        p("ds_write_b128", v(vLn), v(HN + 4 * u, 4), mods="offset:%d" % (128 * u))
    p.wait_all_lgkm()
    p("s_barrier")
    for X in range(2):
        for st in range(6):
            p("ds_read_b128", v(hF + (X * 6 + st) * 4, 4), v(vHf + (st & 1)), mods="offset:%d" % (X * 6144 + (st >> 1) * 128))

    def frag_reads(b):
        buf = aS[b & 1]
        for h, n in enumerate((2 * b, 2 * b + 1)):
            slot = n % RING
            base = vTr if slot < 5 else vTrH
            off = (slot % 5) * SLAB
            for T in range(3):
                for rho in range(2):
                    p("ds_read_b64_tr_b16", v(buf + (h * 3 + T) * 4 + 2 * rho, 2), v(base + T), mods="offset:%d" % (off + 1536 * rho))
    def mm(acc, A, B, first):
        p("v_mfma_f32_16x16x32_bf16", v(acc, 4), A, B, "0" if first else v(acc, 4))
    def mfmas(b):
        buf = aS[b & 1]
        for h, n in enumerate((2 * b, 2 * b + 1)):
            for T in range(3):
                A = v(buf + (h * 3 + T) * 4, 4)
                for X in range(2):
                    if n < 12:
                        st = n // 2
                        mm((accQ if h == 0 else accK) + (T * 2 + X) * 4, A, v(hF + (X * 6 + st) * 4, 4), st == 0)
                    elif n < 18:
                        st = n - 12
                        mm(accV + (T * 2 + X) * 4, v(hF + (X * 6 + st) * 4, 4), A, st == 0)
                    else:
                        st = n - 18
                        mm(accK + (T * 2 + X) * 4, A, v(hF + (X * 6 + st) * 4, 4), False)
    def head(b):
        p.wait_vm("g%d" % b)
        p.wait_all_lgkm()
        p("s_barrier")
        frag_reads(b)
        if 1 <= b <= 7:
            dma_group(b + 4)

    for b in range(6):
        head(b)
        if b > 0: mfmas(b - 1)
    head(6)
    mfmas(5)
    p.c("partial scores over this wave's 48 channels")
    qb, kb = HN, XR
    for T in range(3):
        for X in range(2):
            o = (T * 2 + X)
            p("v_cvt_pk_bf16_f32", v(kb + o * 2), v(accK + o * 4), v(accK + o * 4 + 1))
            p("v_cvt_pk_bf16_f32", v(kb + o * 2 + 1), v(accK + o * 4 + 2), v(accK + o * 4 + 3))
            p("v_cvt_pk_bf16_f32", v(qb + o * 2), v(accQ + o * 4), v(accQ + o * 4 + 1))
            p("v_cvt_pk_bf16_f32", v(qb + o * 2 + 1), v(accQ + o * 4 + 2), v(accQ + o * 4 + 3))
    F = LT
    for X in range(2):
        for T in range(2):
            for e in range(2):
                p("v_mov_b32", v(F + X * 8 + T * 2 + e), v(kb + (T * 2 + X) * 2 + e))
                p("v_mov_b32", v(F + X * 8 + 4 + T * 2 + e), v(qb + (T * 2 + X) * 2 + e))
    for X in range(2):
        p("v_mfma_f32_16x16x32_bf16", v(SR + 4 * X, 4), v(F + X * 8, 4), v(F + X * 8 + 4, 4), "0")
    for X in range(2):
        p("v_mfma_f32_16x16x16_bf16", v(SR + 4 * X, 4), v(kb + (4 + X) * 2, 2), v(qb + (4 + X) * 2, 2), v(SR + 4 * X, 4))
    for X in range(2):
        p("ds_write_b128", v(vSw), v(SR + 4 * X, 4), mods="offset:%d" % (1024 * X))
    head(7)
    SP = accQ
    for w2 in range(4):
        for X in range(2):
            p("ds_read_b128", v(SP + (w2 * 2 + X) * 4, 4), v(vSb), mods="offset:%d" % (w2 * 2048 + X * 1024))
    mfmas(6)
    p.c("residual x -> fp32 accumulator of the out projection (accK), after the partials are consumed")
    for X in range(2):
        for r in range(4):
            p("v_add_f32", v(SR + 4 * X + r), v(SP + X * 4 + r), v(SP + (2 + X) * 4 + r))
            p("v_add_f32", v(SP + X * 4 + r), v(SP + (4 + X) * 4 + r), v(SP + (6 + X) * 4 + r))
            p("v_add_f32", v(SR + 4 * X + r), v(SR + 4 * X + r), v(SP + X * 4 + r))
    c1 = SCALE * LOG2E
    p("s_mov_b32", s(sT3), hexf(c1))
    for X in range(2):
        S4 = SR + 4 * X
        m, m2 = LT + 2 * X, LT + 2 * X + 1
        p("v_max3_f32", v(m), v(S4), v(S4 + 1), v(S4 + 2))
        p("v_max_f32", v(m), v(m), v(S4 + 3))
        p("v_mov_b32", v(m2), v(m))
        p("v_permlane16_swap_b32", v(m), v(m2))
        p("v_max_f32", v(m), v(m), v(m2))
        p("v_mul_f32", v(m), s(sT3), v(m))
        for r in range(4):
            p("v_fma_f32", v(S4 + r), v(S4 + r), s(sT3), "-" + v(m))
        for r in range(4):
            p("v_exp_f32", v(S4 + r), v(S4 + r))
        p("v_add_f32", v(m), v(S4), v(S4 + 1))
        p("v_add_f32", v(m2), v(S4 + 2), v(S4 + 3))
        p("v_add_f32", v(m), v(m), v(m2))
        p("v_mov_b32", v(m2), v(m))
        p("v_permlane16_swap_b32", v(m), v(m2))
        p("v_add_f32", v(m), v(m), v(m2))
        p("v_rcp_f32", v(m), v(m))
        for r in range(4):
            p("v_mul_f32", v(S4 + r), v(S4 + r), v(m))
        for r in range(4):
            p("v_cndmask_b32", v(S4 + r), "0", v(S4 + r), s(sVAL, 2))
        p("v_cvt_pk_bf16_f32", v(PB + 2 * X), v(S4), v(S4 + 1))
        p("v_cvt_pk_bf16_f32", v(PB + 2 * X + 1), v(S4 + 2), v(S4 + 3))
    XA = XR
    for T in range(3):
        for X in range(2):
            p("ds_read_b64", v(XA + (T * 2 + X) * 2, 2), v(vC8 + T), mods="offset:%d" % (SLAB + X * 6144))
    head(8)
    mfmas(7)
    for o in range(6):
        p("v_lshlrev_b32", v(accK + o * 4), "16", v(XA + o * 2))
        p("v_and_b32", v(accK + o * 4 + 1), "0xffff0000", v(XA + o * 2))
        p("v_lshlrev_b32", v(accK + o * 4 + 2), "16", v(XA + o * 2 + 1))
        p("v_and_b32", v(accK + o * 4 + 3), "0xffff0000", v(XA + o * 2 + 1))
    head(9)
    mfmas(8)
    p.c("O^T = V^T P^T")
    vb = HN
    for o in range(6):
        p("v_cvt_pk_bf16_f32", v(vb + o * 2), v(accV + o * 4), v(accV + o * 4 + 1))
        p("v_cvt_pk_bf16_f32", v(vb + o * 2 + 1), v(accV + o * 4 + 2), v(accV + o * 4 + 3))
    for T in range(3):
        for X in range(2):
            o = T * 2 + X
            p("v_mfma_f32_16x16x16_bf16", v(accQ + o * 4, 4), v(vb + o * 2, 2), v(PB + 2 * X, 2), "0")
    for o in range(6):
        p("v_cvt_pk_bf16_f32", v(vb + o * 2), v(accQ + o * 4), v(accQ + o * 4 + 1))
        p("v_cvt_pk_bf16_f32", v(vb + o * 2 + 1), v(accQ + o * 4 + 2), v(accQ + o * 4 + 3))
    for T in range(3):
        for X in range(2):
            p("ds_write_b64", v(vC8 + T), v(vb + (T * 2 + X) * 2, 2), mods="offset:%d" % (X * 6144))
    head(10)
    for st in range(6):
        for X in range(2):
            p("ds_read_b128", v(hF + (X * 6 + st) * 4, 4), v(vHf + (st & 1)), mods="offset:%d" % (X * 6144 + (st >> 1) * 128))
    mfmas(9)
    mfmas(10)
    head(11)
    mfmas(11)
    p.c("x1 (bf16) back to LDS in row layout")
    for o in range(6):
        p("v_cvt_pk_bf16_f32", v(vb + o * 2), v(accK + o * 4), v(accK + o * 4 + 1))
        p("v_cvt_pk_bf16_f32", v(vb + o * 2 + 1), v(accK + o * 4 + 2), v(accK + o * 4 + 3))
    for T in range(3):
        for X in range(2):
            p("ds_write_b64", v(vC8 + T), v(vb + (T * 2 + X) * 2, 2), mods="offset:%d" % (SLAB + X * 6144))
    p.wait_all_lgkm()
    p("s_barrier")
    for u in range(3):
        p("ds_read_b128", v(XR + 4 * u, 4), v(vLn), mods="offset:%d" % (SLAB + 128 * u))
    for u in range(3):
        p("buffer_store_dwordx4", v(XR + 4 * u, 4), v(vX1), s(sWS, 4), "0", mods="offen offset:%d" % (128 * u))
    layernorm_rows(p, XR, hF, LT, sONES)
    for u in range(3):
        p("buffer_store_dwordx4", v(hF + 4 * u, 4), v(vHs), s(sWS, 4), "0", mods="offen offset:%d" % (128 * u))
    p("s_endpgm")

    p.label("K1_side")
    p.reset_state()
    sWSq, sWSo = 20, 24
    srd(p, sWSq, 10, 221184)
    srd(p, sWSo, 12, 73728)
    srd(p, sWS, 18, WS_USED)
    p("s_sub_u32", s(sT0), s(2), str(NMAIN))
    p("s_lshl_b32", s(sT0), s(sT0), "2")
    p("s_add_u32", s(sT0), s(sT0), s(sW))
    p("s_cmp_ge_u32", s(sT0), "72")
    p("s_cselect_b32", s(47), "1", "0")
    p("s_cselect_b32", s(sT1), "72", "0")
    p("s_sub_u32", s(sT0), s(sT0), s(sT1))
    p("s_mul_i32", s(48), s(sT0), "43")
    p("s_lshr_b32", s(48), s(48), "8")
    p("s_mul_i32", s(sT1), s(48), "6")
    p("s_sub_u32", s(49), s(sT0), s(sT1))
    p("s_lshl_b32", s(50), s(sT0), "10")
    A0, A1, B0, D0 = 16, 40, 64, 112
    vA, vB, vO = 8, 9, 10
    p("v_lshlrev_b32", v(vO), "4", v(vL))
    p("v_add_u32", v(vO), s(50), v(vO))
    p("s_cmp_eq_u32", s(47), "1")
    p("s_cbranch_scc1", "K1_side_w")

    p.c("M'[c][c'] = scale*log2e * sum_e Wq[c][e] Wk[c'][e];  rows c(i) = 32st + 8(i>>2) + (i&3) (+4)")
    p("v_lshrrev_b32", v(4), "2", v(vI))
    p("v_and_b32", v(5), "3", v(vI))
    p("v_lshl_add_u32", v(4), v(4), "3", v(5))
    p("s_lshl_b32", s(sT1), s(49), "5")
    p("v_add_u32", v(4), s(sT1), v(4))
    p("v_mul_u32_u24", v(4), "1152", v(4))
    p("v_lshl_add_u32", v(vA), v(vG), "4", v(4))
    p("s_lshl_b32", s(sT1), s(48), "4")
    p("v_add_u32", v(5), s(sT1), v(vI))
    p("v_mul_u32_u24", v(5), "1152", v(5))
    p("v_lshl_add_u32", v(vB), v(vG), "4", v(5))
    p("v_add_u32", v(6), str(4 * 1152), v(vA))
    for u in range(6):
        p("buffer_load_dwordx4", v(A0 + 4 * u, 4), v(vA), s(sWSq, 4), "0", mods="offen offset:%d" % (64 * u))
        p("buffer_load_dwordx4", v(A1 + 4 * u, 4), v(6), s(sWSq, 4), "0", mods="offen offset:%d" % (64 * u))
        p("buffer_load_dwordx4", v(B0 + 4 * u, 4), v(vB), s(sWSq, 4), "0", mods="offen offset:%d" % (384 + 64 * u))
    for u in range(6):
        p("v_mfma_f32_16x16x32_bf16", v(D0, 4), v(A0 + 4 * u, 4), v(B0 + 4 * u, 4), "0" if u == 0 else v(D0, 4))
        p("v_mfma_f32_16x16x32_bf16", v(D0 + 4, 4), v(A1 + 4 * u, 4), v(B0 + 4 * u, 4), "0" if u == 0 else v(D0 + 4, 4))
    p("s_mov_b32", s(sT1), hexf(SCALE * LOG2E))
    for r in range(8):
        p("v_mul_f32", v(D0 + r), s(sT1), v(D0 + r))
    for r in range(4):
        p("v_cvt_pk_bf16_f32", v(D0 + 8 + r), v(D0 + 2 * r), v(D0 + 2 * r + 1))
    p("v_add_u32", v(vO), str(MF_OFF), v(vO))
    p("buffer_store_dwordx4", v(D0 + 8, 4), v(vO), s(sWS, 4), "0", mods="offen")
    p("s_endpgm")

    p.label("K1_side_w")
    p.reset_state()
    p.c("W'[d][n] = sum_e Wv[d][e] Wo[e][n]; rows d(i) = 32st + 16(i>>3) + 4((i>>2)&1) + (i&3) (+8)")
    p("v_lshrrev_b32", v(4), "3", v(vI))
    p("v_bfe_u32", v(5), v(vI), "2", "1")
    p("v_lshlrev_b32", v(4), "4", v(4))
    p("v_lshl_add_u32", v(4), v(5), "2", v(4))
    p("v_and_b32", v(5), "3", v(vI))
    p("v_add_u32", v(4), v(4), v(5))
    p("s_lshl_b32", s(sT1), s(49), "5")
    p("v_add_u32", v(4), s(sT1), v(4))
    p("v_mul_u32_u24", v(4), "1152", v(4))
    p("v_lshl_add_u32", v(vA), v(vG), "4", v(4))
    p("v_add_u32", v(6), str(8 * 1152), v(vA))
    p.c("column n(T,i): w2 = T/3, T' = T%3; T'<2: 48w2 + 8(i>>2) + 4T' + (i&3); T'=2: 48w2 + 32 + i")
    p("s_mul_i32", s(51), s(48), "43")
    p("s_lshr_b32", s(51), s(51), "7")
    p("s_mul_i32", s(sT1), s(51), "3")
    p("s_sub_u32", s(52), s(48), s(sT1))
    p("s_mul_i32", s(51), s(51), "48")
    p("v_lshrrev_b32", v(4), "2", v(vI))
    p("v_and_b32", v(5), "3", v(vI))
    p("v_lshl_add_u32", v(4), v(4), "3", v(5))
    p("s_lshl_b32", s(sT1), s(52), "2")
    p("v_add_u32", v(4), s(sT1), v(4))
    p("v_add_u32", v(5), "32", v(vI))
    p("s_cmp_eq_u32", s(52), "2")
    p("s_cselect_b64", "vcc", "-1", "0")
    p("v_cndmask_b32", v(4), v(4), v(5), "vcc")
    p("v_add_u32", v(4), s(51), v(4))
    p("v_lshlrev_b32", v(4), "1", v(4))
    p("v_mul_u32_u24", v(5), str(8 * 384), v(vG))
    p("v_add_u32", v(vB), v(4), v(5))
    for u in range(6):
        p("buffer_load_dwordx4", v(A0 + 4 * u, 4), v(vA), s(sWSq, 4), "0", mods="offen offset:%d" % (768 + 64 * u))
        p("buffer_load_dwordx4", v(A1 + 4 * u, 4), v(6), s(sWSq, 4), "0", mods="offen offset:%d" % (768 + 64 * u))
    for u in range(6):
        p("s_mov_b32", s(sT1), str(u * 32 * 384))
        for j in range(8):
            p("buffer_load_ushort", v(B0 + 8 * u + j), v(vB), s(sWSo, 4), s(sT1), mods="offen offset:%d" % (j * 384))
    BP = 128
    for u in range(6):
        for e in range(4):
            p("v_lshl_or_b32", v(BP + 4 * u + e), v(B0 + 8 * u + 2 * e + 1), "16", v(B0 + 8 * u + 2 * e))
    for u in range(6):
        p("v_mfma_f32_16x16x32_bf16", v(D0, 4), v(A0 + 4 * u, 4), v(BP + 4 * u, 4), "0" if u == 0 else v(D0, 4))
        p("v_mfma_f32_16x16x32_bf16", v(D0 + 4, 4), v(A1 + 4 * u, 4), v(BP + 4 * u, 4), "0" if u == 0 else v(D0 + 4, 4))
    for r in range(4):
        p("v_cvt_pk_bf16_f32", v(D0 + 8 + r), v(D0 + 2 * r), v(D0 + 2 * r + 1))
    p("v_add_u32", v(vO), str(WF_OFF), v(vO))
    p("buffer_store_dwordx4", v(D0 + 8, 4), v(vO), s(sWS, 4), "0", mods="offen")
    p.label("K1_done")
    p("s_endpgm")
```

```python
from asmgen import *
from k1 import FRAME, HS_OFF, X1_OFF, MF_OFF, WF_OFF, srd, hexf

NWG = 184
TILE = 12288
WREG = 3 * TILE
GBUF = 4 * WREG
LBUF = GBUF + TILE
MBUF = LBUF + 512
K2_LDS = MBUF + 512
DUMMY = 0x100000
NINF = "0xff800000"

def srd_off(p, sreg, ptr, soff, const, nbytes):
    p("s_add_u32", s(sreg), s(ptr), s(soff))
    p("s_addc_u32", s(sreg + 1), s(ptr + 1), "0")
    if const:
        p("s_add_u32", s(sreg), s(sreg), str(const))
        p("s_addc_u32", s(sreg + 1), s(sreg + 1), "0")
    p("s_and_b32", s(sreg + 1), s(sreg + 1), "0xffff")
    p("s_mov_b32", s(sreg + 2), "0x%x" % nbytes)
    p("s_mov_b32", s(sreg + 3), "0x20000")

def gen_k2(p):
    sH, sX1, sO, sMW = 20, 24, 28, 32
    sW, sQT, sFR = 36, 37, 38
    sT0, sT1, sT2, sT3 = 40, 41, 42, 43
    sTile = 44
    sWB = 50
    sHI = 52
    sFLAG = 54
    sOK = 56
    sI, sCUR = 58, 59
    vL, vI, vG = 1, 2, 3
    vK, vV = 4, 8
    vD = 12
    vHq = 16
    vGw = 18
    vPw = 21
    vRr = 25
    vUw = 28
    vUr = 31
    vRo = 33
    vMf = 37
    vLw, vLr = 38, 39
    vL0, vL1, vLs0, vLs1 = 40, 41, 42, 43
    t0, t1, t2, t3, t4, t5 = 44, 45, 46, 47, 48, 49
    vPf = 50
    vID = 52
    PB = 60
    SB = [68, 84]
    X1R = 100
    U = 112
    NEG = 208
    RD = 224
    aG, aK, aV, aW = 0, 48, 96, 144

    p("s_cmp_ge_u32", s(2), str(NWG))
    p("s_cbranch_scc1", "K2_done")
    p("s_load_dwordx16", s(4, 16), s(0, 2), "0")
    p("v_and_b32", v(vL), "63", v(0))
    p("v_lshrrev_b32", v(t0), "6", v(0))
    p("v_and_b32", v(vI), "15", v(0))
    p("v_readfirstlane_b32", s(sW), v(t0))
    p("v_bfe_u32", v(vG), v(0), "4", "2")
    p("s_and_b32", s(sFR), s(2), "7")
    p("s_lshr_b32", s(sQT), s(2), "3")
    p("s_mul_i32", s(sT0), s(sFR), str(FRAME))
    p("s_mul_i32", s(sWB), s(sW), str(WREG))
    for i in range(6):
        p("s_add_u32", s(sT1), s(sW), str(4 * i))
        p("s_add_u32", s(sT2), s(sT1), s(sQT))
        p("s_cmp_ge_u32", s(sT2), "23")
        p("s_cselect_b32", s(sT3), "23", "0")
        p("s_sub_u32", s(sT2), s(sT2), s(sT3))
        p("s_mul_i32", s(sTile + i), s(sT2), str(TILE))
        if i == 5:
            p("s_cmp_ge_u32", s(sT1), "23")
            p("s_cselect_b32", s(sTile + i), str(DUMMY), s(sTile + i))
    p("s_mov_b32", s(sFLAG), "0")
    p("v_lshlrev_b32", v(vD), "4", v(vL))
    p("v_add_u32", v(vD + 1), "4096", v(vD))
    p("v_add_u32", v(vD + 2), "6144", v(vD))
    p("v_add_u32", v(vD + 3), "10240", v(vD))
    p("s_mul_i32", s(sT1), s(sW), "18432")
    p("v_add_u32", v(vMf), s(sT1), v(vD))
    p("s_waitcnt", mods="lgkmcnt(0)")
    srd_off(p, sH, 18, sT0, HS_OFF, FRAME)
    srd_off(p, sX1, 18, sT0, X1_OFF, FRAME)
    srd_off(p, sO, 14, sT0, 0, FRAME)
    p("s_mov_b32", s(sT1), "0")
    srd_off(p, sMW, 18, sT1, MF_OFF, 147456)

    def dma_half(i, half, slot=None, tag=None):
        slot = i % 3 if slot is None else slot
        L = []
        base = slot * TILE + half * 6144
        tg = tag or "t%dh%d" % (i, half)
        L.append(Ins("s_add_u32", ("m0", s(sWB), str(base))))
        for u in range(4):
            L.append(Ins("buffer_load_dwordx4", (v(vD + 2 * half), s(sH, 4), s(sTile + i)), "offen offset:%d lds" % (1024 * u), tg))
        L.append(Ins("s_add_u32", ("m0", s(sWB), str(base + 4096))))
        for u in range(2):
            L.append(Ins("buffer_load_dwordx4", (v(vD + 2 * half + 1), s(sH, 4), s(sTile + i)), "offen offset:%d lds" % (1024 * u), tg))
        return L
    def emit(L):
        for x in L: p.add(x)
    def w_frags(off, tag):
        L = []
        for k in range(18):
            if k % 4 == 0:
                L.append(Ins("s_mov_b32", (s(sT3), str(off + 4096 * (k // 4)))))
            L.append(Ins("buffer_load_dwordx4", (a(aW + 4 * k, 4), v(vMf), s(sMW, 4), s(sT3)), "offen offset:%d" % (1024 * (k % 4)), tag))
        return L

    p.c("L2 prefetch of this workgroup's slice of M' / W' (64-byte granules)")
    p("s_mul_i32", s(sT1), s(sQT), "101")
    p("s_mul_i32", s(sT2), s(sW), "26")
    p("s_add_u32", s(sT1), s(sT1), s(sT2))
    p("v_add_u32", v(t0), s(sT1), v(vL))
    p("v_lshlrev_b32", v(t0), "6", v(t0))
    p("v_cmp_gt_u32", "vcc", "26", v(vL))
    p("v_mov_b32", v(t1), "0x7fffffff")
    p("v_cndmask_b32", v(t0), v(t1), v(t0), "vcc")
    p("buffer_load_dword", v(vPf), v(t0), s(sMW, 4), "0", mods="offen", tag="pf")
    p.c("wave 0 fetches the query tile first, the others the M fragments first")
    p("s_cmp_eq_u32", s(sW), "0")
    p("s_cbranch_scc1", "K2_w0")
    emit(w_frags(0, "m"))
    emit(dma_half(0, 0)); emit(dma_half(0, 1))
    p("s_branch", "K2_w0j")
    p.label("K2_w0")
    p.set_vm([("pf", 1)])
    emit(dma_half(0, 0)); emit(dma_half(0, 1))
    emit(w_frags(0, "m"))
    p.label("K2_w0j")
    p.set_vm([("j", 30)])
    emit(dma_half(1, 0)); emit(dma_half(1, 1))
    emit(dma_half(2, 0)); emit(dma_half(2, 1))

    p.c("K-role addresses: key = l&31, hf = l>>5")
    p("v_and_b32", v(t0), "31", v(vL))
    p("v_lshrrev_b32", v(t1), "5", v(vL))
    p("v_bfe_u32", v(t2), v(t0), "1", "1")
    p("v_bfe_u32", v(t3), v(t0), "2", "2")
    p("v_lshl_or_b32", v(t2), v(t2), "2", v(t3))
    p("v_xor_b32", v(t2), v(t2), v(t1))
    p("v_mul_u32_u24", v(t3), "384", v(t0))
    p("v_add_u32", v(t3), s(sWB), v(t3))
    for sb in range(4):
        p("v_xor_b32", v(t4), str(2 * sb), v(t2))
        p("v_lshl_add_u32", v(vK + sb), v(t4), "4", v(t3))
    p.c("partial-write addresses: swizzle (q&7)^((q>>3)&1)")
    p("v_and_b32", v(t2), "7", v(t0))
    p("v_bfe_u32", v(t4), v(t0), "3", "1")
    p("v_xor_b32", v(t2), v(t2), v(t4))
    p("v_xor_b32", v(t2), v(t2), v(t1))
    for sb in range(4):
        p("v_xor_b32", v(t4), str(2 * sb), v(t2))
        p("v_lshl_add_u32", v(vPw + sb), v(t4), "4", v(t3))
    p("v_lshlrev_b32", v(vLw), "4", v(t0))
    p("s_lshl_b32", s(sT1), s(sW), "2")
    p("s_add_u32", s(sT1), s(sT1), str(LBUF))
    p("v_add_u32", v(vLw), s(sT1), v(vLw))
    p("v_cmp_lt_u32", s(sHI, 2), "31", v(vL))
    p.c("V-role addresses")
    p("v_lshrrev_b32", v(t0), "1", v(vG))
    p("v_and_b32", v(t1), "1", v(vG))
    p("v_lshrrev_b32", v(t2), "2", v(vI))
    p("v_bfe_u32", v(t3), v(0), "1", "1")
    p("v_lshl_or_b32", v(t3), v(t1), "1", v(t3))
    p("v_lshrrev_b32", v(t4), "1", v(t2))
    p("v_lshl_or_b32", v(t4), v(t4), "2", v(t0))
    p("v_xor_b32", v(t3), v(t3), v(t4))
    p("v_lshl_add_u32", v(t0), v(t0), "2", v(t2))
    p("v_mul_u32_u24", v(t0), "384", v(t0))
    p("v_and_b32", v(t1), "1", v(0))
    p("v_lshl_add_u32", v(t0), v(t1), "3", v(t0))
    p("v_add_u32", v(t0), s(sWB), v(t0))
    for Db in range(2):
        for rho in range(2):
            p("v_xor_b32", v(t4), str(4 * Db ^ 2 * rho), v(t3))
            p("v_lshl_add_u32", v(t4), v(t4), "4", v(t0))
            p("v_add_u32", v(vV + Db * 2 + rho), str(rho * 3072), v(t4))
    p.c("16x16 fragment addresses: i = l&15, g = l>>4")
    p("v_bfe_u32", v(t0), v(vI), "1", "1")
    p("v_lshrrev_b32", v(t1), "2", v(vI))
    p("v_lshl_or_b32", v(t0), v(t0), "2", v(t1))
    p("v_mul_u32_u24", v(t1), "384", v(vI))
    for sb in range(2):
        p("v_add_u32", v(t4), str(4 * sb), v(vG))
        p("v_xor_b32", v(t4), v(t4), v(t0))
        p("v_lshl_add_u32", v(vHq + sb), v(t4), "4", v(t1))
    p("s_mul_i32", s(sT1), s(sW), "6")
    p("v_lshrrev_b32", v(t2), "1", v(vG))
    p("v_and_b32", v(t3), "1", v(vG))
    p("v_lshl_add_u32", v(t5), v(t3), "3", v(t1))
    p("v_add_u32", v(t5), str(GBUF), v(t5))
    for T in range(3):
        p("s_add_u32", s(sT2), s(sT1), str(2 * T))
        p("v_add_u32", v(t4), s(sT2), v(t2))
        p("v_xor_b32", v(t4), v(t4), v(t0))
        p("v_lshl_add_u32", v(vGw + T), v(t4), "4", v(t5))
    p.c("U buffer (all-gather): swizzle (q>>1)&7")
    p("v_lshrrev_b32", v(t0), "1", v(vI))
    for T in range(3):
        p("s_add_u32", s(sT2), s(sT1), str(2 * T))
        p("v_add_u32", v(t4), s(sT2), v(t2))
        p("v_xor_b32", v(t4), v(t4), v(t0))
        p("v_lshl_add_u32", v(vUw + T), v(t4), "4", v(t5))
    for sb in range(2):
        p("v_add_u32", v(t4), str(4 * sb), v(vG))
        p("v_xor_b32", v(t4), v(t4), v(t0))
        p("v_lshl_add_u32", v(t4), v(t4), "4", v(t1))
        p("v_add_u32", v(vUr + sb), str(GBUF), v(t4))
    p.c("reduce reads: chunk 6w + 2pi + (g>>1) of source wave 2ab + (g&1)")
    p("v_and_b32", v(t0), "7", v(vI))
    p("v_lshrrev_b32", v(t4), "3", v(vI))
    p("v_xor_b32", v(t0), v(t0), v(t4))
    p("v_mul_u32_u24", v(t3), str(WREG), v(t3))
    p("v_add_u32", v(t3), v(t3), v(t1))
    for T in range(3):
        p("s_add_u32", s(sT2), s(sT1), str(2 * T))
        p("v_add_u32", v(t4), s(sT2), v(t2))
        p("v_xor_b32", v(t4), v(t4), v(t0))
        p("v_lshl_add_u32", v(vRr + T), v(t4), "4", v(t3))
    p("v_lshlrev_b32", v(vLr), "4", v(vI))
    p("v_add_u32", v(vLr), str(LBUF), v(vLr))
    p.c("residual / output offsets")
    p("s_lshl_b32", s(sT2), s(sQT), "5")
    p("v_add_u32", v(t0), s(sT2), v(vI))
    p("v_mul_u32_u24", v(t0), "384", v(t0))
    p("s_mul_i32", s(sT2), s(sW), "96")
    p("v_add_u32", v(t0), s(sT2), v(t0))
    p("v_lshl_add_u32", v(vRo), v(vG), "4", v(t0))
    p("v_lshl_add_u32", v(vRo + 1), v(vG), "3", v(t0))
    p("v_add_u32", v(vRo + 1), "64", v(vRo + 1))
    p("v_add_u32", v(vRo + 2), "6144", v(vRo))
    p("v_add_u32", v(vRo + 3), "6144", v(vRo + 1))
    p.c("selection fragment: A[rho][(g,j)] = 1 iff rho == j + 8(g>>1)")
    p("v_lshrrev_b32", v(t0), "1", v(vG))
    p("v_lshlrev_b32", v(t0), "3", v(t0))
    p("v_sub_u32", v(t0), v(vI), v(t0))
    p("v_mov_b32", v(t1), "0x3f80")
    p("v_mov_b32", v(t2), "0x3f800000")
    for e in range(4):
        p("v_cmp_eq_u32", "vcc", str(2 * e), v(t0))
        p("v_cndmask_b32", v(t3), "0", v(t1), "vcc")
        p("v_cmp_eq_u32", "vcc", str(2 * e + 1), v(t0))
        p("v_cndmask_b32", v(t4), "0", v(t2), "vcc")
        p("v_or_b32", v(vID + e), v(t3), v(t4))
    p("v_mov_b32", v(vL0), "0")
    p("v_mov_b32", v(vL1), "0")
    for r in range(96):
        p("v_mov_b32", v(U + r), "0")

    p.c("G^T = M'^T h_q^T")
    p.c("wave 0: [q tile 12][M 18][t1 12][t2 12]; others: [M 18][t0 12][t1 12][t2 12]")
    p("s_cmp_eq_u32", s(sW), "0")
    p("s_cbranch_scc0", "K2_nq")
    p("s_waitcnt", mods="vmcnt(42)")
    p.label("K2_nq")
    p("s_barrier")
    HQ = 208
    for X in range(2):
        for st in range(6):
            p("ds_read_b128", v(HQ + (X * 6 + st) * 4, 4), v(vHq + (st & 1)), mods="offset:%d" % (X * 6144 + (st >> 1) * 128))
    p("s_cmp_eq_u32", s(sW), "0")
    p("s_cbranch_scc1", "K2_mw0")
    p("s_waitcnt", mods="vmcnt(36)")
    p("s_branch", "K2_mwj")
    p.label("K2_mw0")
    p("s_waitcnt", mods="vmcnt(24)")
    p.label("K2_mwj")
    p.set_vm([("j", 12), ("t1", 12), ("t2h1", 12)])
    GA = SB[0]
    for st in range(6):
        for T in range(3):
            for X in range(2):
                acc = GA + (T * 2 + X) * 4
                p("v_mfma_f32_16x16x32_bf16", v(acc, 4), a(aW + (T * 6 + st) * 4, 4), v(HQ + (X * 6 + st) * 4, 4), "0" if st == 0 else v(acc, 4))
    for o in range(6):
        p("v_cvt_pk_bf16_f32", v(PB + (o % 4) * 2), v(GA + o * 4), v(GA + o * 4 + 1))
        p("v_cvt_pk_bf16_f32", v(PB + (o % 4) * 2 + 1), v(GA + o * 4 + 2), v(GA + o * 4 + 3))
        p("ds_write_b64", v(vGw + o // 2), v(PB + (o % 4) * 2, 2), mods="offset:%d" % ((o % 2) * 6144))
    p.wait_all_lgkm()
    p("s_barrier")
    for sb in range(4):
        p("v_subrev_u32", v(t0 + sb), s(sWB), v(vK + sb))
        p("v_add_u32", v(t0 + sb), str(GBUF), v(t0 + sb))
    for st in range(12):
        p("ds_read_b128", a(aG + 4 * st, 4), v(t0 + (st & 3)), mods="offset:%d" % (128 * (st >> 2)))

    def kread(i, st, slot=None):
        slot = i % 3 if slot is None else slot
        return Ins("ds_read_b128", (a(aK + 4 * st, 4), v(vK + (st & 3))), "offset:%d" % (slot * TILE + 128 * (st >> 2)))
    def vread(i, D, m, rho, slot=None):
        slot = i % 3 if slot is None else slot
        return Ins("ds_read_b64_tr_b16", (a(aV + (m * 6 + D) * 4 + 2 * rho, 2), v(vV + (D & 1) * 2 + rho)),
                   "offset:%d" % (slot * TILE + m * 6144 + 128 * (D >> 1)), "v%dm%d" % (i, m))
    def smfma(i, st, c0="0"):
        S = SB[i % 2]
        return Ins("v_mfma_f32_32x32x16_bf16", (v(S, 16), a(aK + 4 * st, 4), a(aG + 4 * st, 4), c0 if st == 0 else v(S, 16)))
    def pvmfma(D, m):
        return Ins("v_mfma_f32_32x32x16_bf16", (v(U + 16 * D, 16), a(aV + (m * 6 + D) * 4, 4), v(PB + 4 * m, 4), v(U + 16 * D, 16)))
    def ex(i, r):
        S = SB[i % 2]
        return Ins("v_exp_f32", (v(S + r), v(S + r)))
    def ad(i, r):
        S = SB[i % 2]
        acc = vL0 if r % 2 == 0 else vL1
        return Ins("v_add_f32", (v(acc), v(acc), v(S + r)))
    def cv(i, r):
        S = SB[i % 2]
        return Ins("v_cvt_pk_bf16_f32", (v(PB + r // 2), v(S + r), v(S + r + 1)))
    def mask_fix(S, tile_sreg, val):
        lab = p.uid("K2_msk")
        p("s_cmp_eq_u32", s(tile_sreg), str(22 * TILE))
        p("s_cbranch_scc0", lab)
        p.skip_begin()
        p("v_mov_b32", v(t4), val)
        p("v_cndmask_b32", v(S + 12), v(S + 12), v(t4), s(sHI, 2))
        for r in (13, 14, 15):
            p("v_mov_b32", v(S + r), val)
        p.skip_end()
        p.label(lab)

    p.c("prologue: scores of the first tile")
    p.wait_vm("j")
    for st in range(12):
        p.add(kread(0, st))
    for st in range(12):
        p.add(smfma(0, st))
    p.wait_vm("t1")
    for st in range(4):
        p.add(kread(1, st))

    x1_loads = []
    for X in range(2):
        x1_loads.append(Ins("buffer_load_dwordx4", (v(X1R + 6 * X, 4), v(vRo + 2 * X), s(sX1, 4), "0"), "offen", "x1"))
        x1_loads.append(Ins("buffer_load_dwordx2", (v(X1R + 6 * X + 4, 2), v(vRo + 2 * X + 1), s(sX1, 4), "0"), "offen", "x1"))

    for i in range(5):
        p.c("iteration %d" % i)
        n = i + 1
        A = [[] for _ in range(12)]
        B = [[] for _ in range(12)]
        for k in range(8): A[k].append(kread(n, 4 + k))
        for k in range(4): A[k] += [ex(i, 2 * k), ex(i, 2 * k + 1)]
        for k in range(4): A[4 + k] += [ad(i, 2 * k), ad(i, 2 * k + 1), cv(i, 2 * k)]
        for k in range(4): A[8 + k] += [ex(i, 8 + 2 * k), ex(i, 9 + 2 * k)]
        for k in range(8): A[4 + k].append(vread(i, k // 2, 0, k % 2))
        B[0] += [vread(i, 4, 0, 0), vread(i, 4, 0, 1), "mask", ad(i, 8)]
        B[1] += [vread(i, 5, 0, 0), vread(i, 5, 0, 1), ad(i, 9), cv(i, 8), ad(i, 10)]
        B[2] += [vread(i, 0, 1, 0), vread(i, 0, 1, 1), ad(i, 11), cv(i, 10), ad(i, 12)]
        B[3] += [vread(i, 1, 1, 0), vread(i, 1, 1, 1), ad(i, 13), cv(i, 12), ad(i, 14)]
        B[4] += [vread(i, 2, 1, 0), vread(i, 2, 1, 1), ad(i, 15), cv(i, 14)]
        B[5] += [vread(i, 3, 1, 0), vread(i, 3, 1, 1), vread(i, 4, 1, 0), vread(i, 4, 1, 1)]
        B[6] += [vread(i, 5, 1, 0), vread(i, 5, 1, 1)]
        if i + 3 <= 5:
            h0, h1 = dma_half(i + 3, 0), dma_half(i + 3, 1)
            B[6] += h0[:3]; B[7] += h0[3:]
            B[10] += [("lgkm", "v%dm1" % i)] + h1[:4]; B[11] += h1[4:]
        if i == 3:
            wf = w_frags(73728, "w")
            B[6] += wf[:5]; B[7] += wf[5:11]; B[10] += wf[11:17]; B[11] += wf[17:] + x1_loads
        if i + 2 <= 5:
            B[8] += [("vm", "t%dh1" % (i + 2)), kread(i + 2, 0), kread(i + 2, 1)]
            B[9] += [kread(i + 2, 2), kread(i + 2, 3)]
        def put(L):
            for x in L:
                if x == "mask": mask_fix(SB[i % 2], sTile + i, "0")
                elif isinstance(x, tuple):
                    (p.wait_lgkm if x[0] == "lgkm" else p.wait_vm)(x[1])
                else: p.add(x)
        for k in range(12):
            p.add(smfma(n, k)); put(A[k])
        for k in range(12):
            p.add(pvmfma(k % 6, k // 6)); put(B[k])

    p.c("last tile")
    i = 5
    S = SB[1]
    p("v_mov_b32", v(vLs0), v(vL0))
    p("v_mov_b32", v(vLs1), v(vL1))
    for D in range(6):
        for m in range(2):
            for rho in range(2):
                if D < 3: p.add(vread(i, D, m, rho))
    for r in range(16): p.add(ex(i, r))
    mask_fix(S, sTile + 5, "0")
    for r in range(0, 16, 2): p.add(cv(i, r))
    for D in range(3, 6):
        for m in range(2):
            for rho in range(2):
                p.add(vread(i, D, m, rho))
    def part_write(D):
        L = []
        for m in range(2):
            base = U + 16 * D + 8 * m
            tmp = HQ_TMP + 4 * ((2 * D + m) % 4)
            for e in range(4):
                L.append(Ins("v_cvt_pk_bf16_f32", (v(tmp + e), v(base + 2 * e), v(base + 2 * e + 1))))
            sp = 2 * D + m
            L.append(Ins("ds_write_b128", (v(vPw + (sp & 3)), v(tmp, 4)), "offset:%d" % (128 * (sp >> 2))))
        return L
    HQ_TMP = SB[0]
    adds = [ad(i, r) for r in range(16)]
    for D in range(6):
        p.add(pvmfma(D, 0))
        for x in adds[:2]: p.add(x)
        adds = adds[2:]
        p.add(pvmfma(D, 1))
        for x in adds[:2 if D < 2 else 1]: p.add(x)
        adds = adds[2 if D < 2 else 1:]
        if D >= 2:
            for x in part_write(D - 2): p.add(x)
    for x in adds: p.add(x)
    lab = p.uid("K2_dum")
    p("s_cmp_eq_u32", s(sTile + 5), str(DUMMY))
    p("s_cbranch_scc0", lab)
    p.skip_begin()
    p("v_mov_b32", v(vL0), v(vLs0))
    p("v_mov_b32", v(vL1), v(vLs1))
    p.skip_end()
    p.label(lab)
    p("v_add_f32", v(vL0), v(vL0), v(vL1))
    p("v_mov_b32", v(vL1), v(vL0))
    p("v_permlane32_swap_b32", v(vL0), v(vL1))
    p("v_add_f32", v(vL0), v(vL0), v(vL1))
    p("ds_write_b32", v(vLw), v(vL0))
    for D in (4, 5):
        for x in part_write(D): p.add(x)
    p.wait_all_lgkm()
    p("s_barrier")

    p.label("K2_reduce")
    p.c("sum the four partial U through the matrix pipe")
    LT = SB[0]
    for X in range(2):
        p("ds_read_b128", v(LT + 4 * X, 4), v(vLr), mods="offset:%d" % (256 * X))
    RB = U
    for pi in range(3):
        p("v_add_u32", v(t0 + pi), str(2 * WREG), v(vRr + pi))
    for pi in range(3):
        for X in range(2):
            for ab in range(2):
                p("ds_read_b128", v(RB + ((pi * 2 + X) * 2 + ab) * 4, 4), v((t0 if ab else vRr) + pi), mods="offset:%d" % (X * 6144))
    for X in range(2):
        p("v_add_f32", v(LT + 4 * X), v(LT + 4 * X), v(LT + 4 * X + 1))
        p("v_add_f32", v(LT + 4 * X + 2), v(LT + 4 * X + 2), v(LT + 4 * X + 3))
        p("v_add_f32", v(LT + 4 * X), v(LT + 4 * X), v(LT + 4 * X + 2))
    p.c("the reference point 0 is only safe while the row sums stay inside [2^-60, 2^60]; otherwise redo with the true row max")
    p("s_mov_b32", s(sT0), hexf(2.0 ** -60))
    p("s_mov_b32", s(sT1), hexf(2.0 ** 60))
    p("v_cmp_le_f32", s(sOK, 2), s(sT0), v(LT))
    p("v_cmp_ge_f32", "vcc", s(sT1), v(LT))
    p("s_and_b64", s(sOK, 2), s(sOK, 2), "vcc")
    p("v_cmp_le_f32", "vcc", s(sT0), v(LT + 4))
    p("s_and_b64", s(sOK, 2), s(sOK, 2), "vcc")
    p("v_cmp_ge_f32", "vcc", s(sT1), v(LT + 4))
    p("s_and_b64", s(sOK, 2), s(sOK, 2), "vcc")
    p("s_cmp_eq_u64", s(sOK, 2), "-1")
    p("s_cselect_b32", s(sT0), "1", s(sFLAG))
    p("s_cmp_eq_u32", s(sT0), "0")
    p("s_cbranch_scc1", "K2_slow")
    for X in range(2):
        p("v_rcp_f32", v(LT + 4 * X), v(LT + 4 * X))
    for pi in range(3):
        for X in range(2):
            for ab in range(2):
                o = pi * 2 + X
                p("v_mfma_f32_16x16x32_bf16", v(RD + 4 * o, 4), v(vID, 4), v(RB + (o * 2 + ab) * 4, 4), "0" if ab == 0 else v(RD + 4 * o, 4))
    for o in range(6):
        X = o % 2
        for r in range(4):
            p("v_mul_f32", v(RD + 4 * o + r), v(RD + 4 * o + r), v(LT + 4 * X))
        p("v_cvt_pk_bf16_f32", v(PB + (o % 4) * 2), v(RD + 4 * o), v(RD + 4 * o + 1))
        p("v_cvt_pk_bf16_f32", v(PB + (o % 4) * 2 + 1), v(RD + 4 * o + 2), v(RD + 4 * o + 3))
        p("ds_write_b64", v(vUw + o // 2), v(PB + (o % 4) * 2, 2), mods="offset:%d" % (X * 6144))
    p.c("residual into the accumulators: tiles T'=0,1 hold n = 8g+4T'+r, tile 2 holds 32+4g+r")
    for X in range(2):
        for T in range(3):
            acc = RD + (T * 2 + X) * 4
            src = X1R + 6 * X + 2 * T
            p("v_lshlrev_b32", v(acc), "16", v(src))
            p("v_and_b32", v(acc + 1), "0xffff0000", v(src))
            p("v_lshlrev_b32", v(acc + 2), "16", v(src + 1))
            p("v_and_b32", v(acc + 3), "0xffff0000", v(src + 1))
    p.wait_all_lgkm()
    p("s_barrier")
    for st in range(6):
        for X in range(2):
            p("ds_read_b128", v(RB + (X * 6 + st) * 4, 4), v(vUr + (st & 1)), mods="offset:%d" % (X * 6144 + (st >> 1) * 128))
    for st in range(6):
        for T in range(3):
            for X in range(2):
                acc = RD + (T * 2 + X) * 4
                p("v_mfma_f32_16x16x32_bf16", v(acc, 4), a(aW + (T * 6 + st) * 4, 4), v(RB + (X * 6 + st) * 4, 4), v(acc, 4))
    for X in range(2):
        o = PB if X == 0 else SB[0]
        for T in range(3):
            acc = RD + (T * 2 + X) * 4
            p("v_cvt_pk_bf16_f32", v(o + 2 * T), v(acc), v(acc + 1))
            p("v_cvt_pk_bf16_f32", v(o + 2 * T + 1), v(acc + 2), v(acc + 3))
        p("buffer_store_dwordx4", v(o, 4), v(vRo + 2 * X), s(sO, 4), "0", mods="offen")
        p("buffer_store_dwordx2", v(o + 4, 2), v(vRo + 2 * X + 1), s(sO, 4), "0", mods="offen")
    p("s_endpgm")

    p.label("K2_slow")
    p("s_waitcnt", mods="vmcnt(0) lgkmcnt(0)")
    p.reset_state()
    p("s_barrier")
    p("s_mov_b32", s(sFLAG), "1")
    S = SB[0]
    def tile_setup(done):
        p("s_lshl_b32", s(sT0), s(sI), "2")
        p("s_add_u32", s(sT0), s(sT0), s(sW))
        p("s_cmp_ge_u32", s(sT0), "23")
        p("s_cbranch_scc1", done)
        p("s_add_u32", s(sT0), s(sT0), s(sQT))
        p("s_cmp_ge_u32", s(sT0), "23")
        p("s_cselect_b32", s(sT1), "23", "0")
        p("s_sub_u32", s(sT0), s(sT0), s(sT1))
        p("s_mul_i32", s(sCUR), s(sT0), str(TILE))
        for half in range(2):
            for x in dma_half(0, half, slot=0):
                x.ops = [s(sCUR) if o == s(sTile) else o for o in x.ops]
                x.classify()
                p.add(x)
        p("s_waitcnt", mods="vmcnt(0)")
        for st in range(12): p.add(kread(0, st, slot=0))
    p("s_mov_b32", s(sI), "0")
    p("v_mov_b32", v(vL0), NINF)
    p.label("K2_mx")
    tile_setup("K2_mx_done")
    for st in range(12): p.add(smfma(0, st))
    p("s_nop", "15")
    mask_fix(S, sCUR, NINF)
    for r in range(0, 16, 2):
        p("v_max3_f32", v(vL0), v(vL0), v(S + r), v(S + r + 1))
    p("s_waitcnt", mods="lgkmcnt(0)")
    p("s_add_u32", s(sI), s(sI), "1")
    p("s_branch", "K2_mx")
    p.label("K2_mx_done")
    p.reset_state()
    p("v_mov_b32", v(vL1), v(vL0))
    p("v_permlane32_swap_b32", v(vL0), v(vL1))
    p("v_max_f32", v(vL0), v(vL0), v(vL1))
    p("v_add_u32", v(t0), "512", v(vLw))
    p("ds_write_b32", v(t0), v(vL0))
    p.wait_all_lgkm()
    p("s_barrier")
    p("v_and_b32", v(t0), "31", v(vL))
    p("v_lshlrev_b32", v(t0), "4", v(t0))
    p("v_add_u32", v(t0), str(MBUF), v(t0))
    p("ds_read_b128", v(LT, 4), v(t0))
    p("v_max3_f32", v(LT), v(LT), v(LT + 1), v(LT + 2))
    p("v_max_f32", v(LT), v(LT), v(LT + 3))
    for r in range(16):
        p("v_sub_f32", v(NEG + r), "0", v(LT))
    for r in range(96):
        p("v_mov_b32", v(U + r), "0")
    p("v_mov_b32", v(vL0), "0")
    p("v_mov_b32", v(vL1), "0")
    p("s_mov_b32", s(sI), "0")
    p.label("K2_sl")
    tile_setup("K2_sl_done")
    for st in range(12): p.add(smfma(0, st, c0=v(NEG, 16)))
    p("s_nop", "15")
    for r in range(16): p.add(ex(0, r))
    mask_fix(S, sCUR, "0")
    for r in range(16): p.add(ad(0, r))
    for r in range(0, 16, 2): p.add(cv(0, r))
    for D in range(6):
        for m in range(2):
            for rho in range(2): p.add(vread(0, D, m, rho, slot=0))
    for m in range(2):
        for D in range(6): p.add(pvmfma(D, m))
    p("s_waitcnt", mods="lgkmcnt(0)")
    p("s_add_u32", s(sI), s(sI), "1")
    p("s_branch", "K2_sl")
    p.label("K2_sl_done")
    p.reset_state()
    p("s_nop", "15")
    p("v_add_f32", v(vL0), v(vL0), v(vL1))
    p("v_mov_b32", v(vL1), v(vL0))
    p("v_permlane32_swap_b32", v(vL0), v(vL1))
    p("v_add_f32", v(vL0), v(vL0), v(vL1))
    p("ds_write_b32", v(vLw), v(vL0))
    HQ_TMP = SB[1]
    for D in range(6):
        for x in part_write(D): p.add(x)
    p.wait_all_lgkm()
    p("s_barrier")
    p("s_branch", "K2_reduce")
    p.label("K2_done")
    p("s_endpgm")
```

```python
import sys
from asmgen import *
import k1, k2

HEADER = """; TimeSformer block: temporal attention + spatial attention, two launches.
; @launch kernel=tsf_temporal_kernel grid=(%d,1,1) block=(256,1,1) lds=%d
; @launch kernel=tsf_spatial_kernel grid=(%d,1,1) block=(256,1,1) lds=%d
.amdgcn_target "amdgcn-amd-amdhsa--gfx950"
"""

def build():
    p1 = Prog(); k1.gen_k1(p1); p1.finish()
    p2 = Prog(); k2.gen_k2(p2); p2.finish()
    t = HEADER % (k1.NMAIN + k1.NSIDE, k1.K1_LDS, k2.NWG, k2.K2_LDS)
    t += kernel_head("tsf_temporal_kernel") + p1.text()
    t += kernel_head("tsf_spatial_kernel") + p2.text()
    t += kernel_desc("tsf_temporal_kernel", 256, 256)
    t += kernel_desc("tsf_spatial_kernel", 512, 256)
    return t

if __name__ == "__main__":
    out = sys.argv[1] if len(sys.argv) > 1 else "tsf.s"
    open(out, "w").write(build())
    print("wrote", out)
```
